```python
import torch

def _softmax(x, axis=-1):
    return torch.softmax(x, dim=axis)

def _gelu(x):
    return torch.nn.functional.gelu(x, approximate='tanh')

def _silu(x):
    return torch.nn.functional.silu(x)

def _sigmoid(x):
    return torch.sigmoid(x)

def _layernorm(x, axis=-1, eps=1e-05):
    m = x.mean(dim=axis, keepdim=True)
    v = x.var(dim=axis, keepdim=True, unbiased=False)
    return (x - m) / torch.sqrt(v + eps)

def _scatter_add(tgt, idx, src, axis=0):
    return tgt.clone().index_add_(axis, idx, src)

def _segment_sum(src, seg, n):
    out = torch.zeros((n,) + src.shape[1:], dtype=src.dtype)
    return out.index_add_(0, seg, src)

def _pad(x, pw):
    flat = tuple((v for pair in reversed(pw) for v in pair))
    return torch.nn.functional.pad(x, flat)
kernel_name = 'adaLN_cond__gqa_block_cached__mixer_channel_mlp__decode'

def setup_inputs():

    _w = lambda a: (lambda t: t.to(torch.bfloat16) if t.is_floating_point() else t)(torch.as_tensor(a))

    def _A_setup():
        B, Sq, D = (1, 1, 1024)
        Hq, Hkv, Sk, Dh = (32, 4, 65536, 128)
        assert Hq % Hkv == 0, (Hq, Hkv)
        return {'x': _w((lambda *s: torch.randn(*s, dtype=torch.bfloat16) * 0.1)(B, Sq, D)), 'k_cache': _w((lambda *s: torch.randn(*s, dtype=torch.bfloat16) * 0.8)(B, Hkv, Sk, Dh)), 'v_cache': _w((lambda *s: torch.randn(*s, dtype=torch.bfloat16) * 0.8)(B, Hkv, Sk, Dh)), 'wq': _w((lambda *s: torch.randn(*s, dtype=torch.bfloat16) * 0.8)(D, Hq * Dh) * D ** (-0.5)), 'wo': _w((lambda *s: torch.randn(*s, dtype=torch.bfloat16) * 0.8)(Hq * Dh, D) * (Hq * Dh) ** (-0.5))}
    _A_in = _A_setup()

    def _B_setup():
        B, S, D, F = (1, 1, 1024, 3584)
        return {'x': _w((lambda *s: torch.randn(*s, dtype=torch.bfloat16) * 0.1)(B, S, D)), 'w1': _w((lambda *s: torch.randn(*s, dtype=torch.bfloat16) * 3.2)(D, F) * D ** (-0.5)), 'b1': _w((lambda *s: torch.randn(*s, dtype=torch.bfloat16) * 3.2)(F)), 'w2': _w((lambda *s: torch.randn(*s, dtype=torch.bfloat16) * 3.2)(F, D) * F ** (-0.5)), 'b2': _w((lambda *s: torch.randn(*s, dtype=torch.bfloat16) * 3.2)(D))}
    _B_in = _B_setup()
    return {'A_x': _A_in['x'], 'A_k_cache': _A_in['k_cache'], 'A_v_cache': _A_in['v_cache'], 'A_wq': _A_in['wq'], 'A_wo': _A_in['wo'], 'B_x': _B_in['x'], 'B_w1': _B_in['w1'], 'B_b1': _B_in['b1'], 'B_w2': _B_in['w2'], 'B_b2': _B_in['b2'], 'c': _w((lambda *s: torch.randn(*s, dtype=torch.bfloat16) * 0.4)(1, 1024) * 8.0), 'w_mod': _w((lambda *s: torch.randn(*s, dtype=torch.bfloat16) * 0.4)(1024, 6 * 1024) * 1024 ** (-0.5) * 8.0)}

def reference(A_x, A_k_cache, A_v_cache, A_wq, A_wo, B_x, B_w1, B_b1, B_w2, B_b2, c, w_mod):

    def _A_ref(x, k_cache, v_cache, wq, wo):
        B, Sq, D = x.shape
        Hq, Dh = (32, 128)
        Hkv = k_cache.shape[1]
        rep = Hq // Hkv
        q = (lambda x, *d: x.permute(*d))((x @ wq).reshape(B, Sq, Hq, Dh), 0, 2, 1, 3)
        k = (lambda x, n, axis: torch.repeat_interleave(x, n, dim=axis))(k_cache, rep, axis=1)
        v = (lambda x, n, axis: torch.repeat_interleave(x, n, dim=axis))(v_cache, rep, axis=1)
        scores = torch.einsum('bhqd,bhkd->bhqk', q, k) * Dh ** (-0.5)
        p = _softmax(scores, axis=-1)
        o = torch.einsum('bhqk,bhkd->bhqd', p, v)
        return (lambda x, *d: x.permute(*d))(o, 0, 2, 1, 3).reshape(B, Sq, Hq * Dh) @ wo

    def _B_ref(x, w1, b1, w2, b2):
        y = _layernorm(x, axis=-1)
        h = _gelu(torch.einsum('bsd,df->bsf', y, w1) + b1)
        return torch.einsum('bsf,fd->bsd', h, w2) + b2
    x = A_x
    mod = (_silu(c) @ w_mod).reshape(c.shape[0], 6, 1, -1)
    sa, ca, ga, sb, cb, gb = (mod[:, 0].clone(), mod[:, 1].clone(), mod[:, 2].clone(), mod[:, 3].clone(), mod[:, 4].clone(), mod[:, 5].clone())
    h = _layernorm(x, axis=-1) * (1 + ca) + sa
    x = x + ga * _A_ref(h, A_k_cache, A_v_cache, A_wq, A_wo)
    h = _layernorm(x, axis=-1) * (1 + cb) + sb
    x = x + gb * _B_ref(h, B_w1, B_b1, B_w2, B_b2)
    return x
```

```python
import re

TRANS = ('v_exp_f32', 'v_log_f32', 'v_rcp_f32', 'v_rsq_f32', 'v_sqrt_f32', 'v_sin_f32', 'v_cos_f32')

def _regs(tok):
    tok = tok.strip()
    tok = tok.lstrip('-')
    m = re.fullmatch(r'abs\((.*)\)', tok)
    if m: tok = m.group(1)
    tok = tok.strip('|')
    m = re.fullmatch(r'([vsa])\[(\d+):(\d+)\]', tok)
    if m:
        return {f"{m.group(1)}{i}" for i in range(int(m.group(2)), int(m.group(3)) + 1)}
    m = re.fullmatch(r'([vsa])(\d+)', tok)
    if m:
        return {tok}
    if tok in ('vcc', 'vcc_lo', 'vcc_hi'):
        return {'vcc'}
    if tok in ('exec', 'exec_lo', 'exec_hi'):
        return {'exec'}
    if tok == 'm0':
        return {'m0'}
    return set()

def _split_ops(s):
    out = []; depth = 0; cur = ''
    for ch in s:
        if ch in '[(': depth += 1
        if ch in '])': depth -= 1
        if ch == ',' and depth == 0:
            out.append(cur.strip()); cur = ''
        else:
            cur += ch
    if cur.strip(): out.append(cur.strip())
    return out

class Ins:
    __slots__ = ('text', 'op', 'dst', 'src', 'kind', 'dpp', 'srcC', 'srcAB', 'store_data', 'ws')
    def __init__(self, text):
        self.text = text
        t = text.split(';')[0].strip()
        parts = t.split(None, 1)
        self.op = parts[0]
        rest = parts[1] if len(parts) > 1 else ''
        ops = _split_ops(rest)
        mods = ''
        clean = []
        for o in ops:
            w = o.split()
            clean.append(w[0] if w else '')
            mods += ' ' + ' '.join(w[1:])
        ops = clean
        op = self.op
        self.dst = set(); self.src = set(); self.kind = 'other'
        self.dpp = ('row_' in mods or 'quad_perm' in mods or 'wave_' in mods or op.endswith('_dpp'))
        self.srcC = set(); self.srcAB = set(); self.store_data = set()
        self.ws = 1
        if op == 's_nop':
            self.ws = int(ops[0], 0) + 1
            self.kind = 'salu'
        elif op.startswith('v_mfma') or op.startswith('v_smfmac'):
            self.kind = 'mfma'
            self.dst = _regs(ops[0]); self.srcAB = _regs(ops[1]) | _regs(ops[2]); self.srcC = _regs(ops[3])
            self.src = self.srcAB | self.srcC
        elif op.startswith('v_'):
            self.kind = 'valu'
            base = op.replace('_e32', '').replace('_e64', '').replace('_dpp', '')
            if base.startswith('v_cmp'):
                self.dst = _regs(ops[0]);
                for o in ops[1:]: self.src |= _regs(o)
            elif base in ('v_permlane32_swap_b32', 'v_permlane16_swap_b32', 'v_swap_b32'):
                self.dst = _regs(ops[0]) | _regs(ops[1]); self.src = set(self.dst)
                self.kind = 'permlane' if 'permlane' in base else 'valu'
            elif base in ('v_add_co_u32', 'v_sub_co_u32', 'v_addc_co_u32', 'v_subb_co_u32', 'v_mad_u64_u32', 'v_div_scale_f32'):
                self.dst = _regs(ops[0]) | _regs(ops[1])
                for o in ops[2:]: self.src |= _regs(o)
            else:
                self.dst = _regs(ops[0])
                for o in ops[1:]: self.src |= _regs(o)
                if base in ('v_fmac_f32', 'v_pk_fmac_f16', 'v_dot2c_f32_bf16', 'v_writelane_b32', 'v_mac_f32'):
                    self.src |= self.dst
                if base == 'v_cndmask_b32' and len(ops) == 4 and ops[3] == 'vcc':
                    self.src |= {'vcc'}
                if self.dpp:
                    self.src |= self.dst
            if base in TRANS: self.kind = 'trans'
            if base in ('v_readlane_b32', 'v_readfirstlane_b32'): self.kind = 'readlane'
        elif op.startswith('buffer_') or op.startswith('global_') or op.startswith('flat_'):
            self.kind = 'vmem'
            if 'load' in op and ' lds' not in (' ' + mods + ' '):
                self.dst = _regs(ops[0])
                for o in ops[1:]: self.src |= _regs(o)
            elif op.startswith('buffer_store') or op.startswith('buffer_atomic'):
                for o in ops: self.src |= _regs(o)
                if 'x4' in op or 'x3' in op: self.store_data = _regs(ops[0])
                if op.startswith('buffer_atomic') and 'sc0' in mods: self.dst = _regs(ops[0])
            elif op.startswith('global_store'):
                for o in ops: self.src |= _regs(o)
                if 'x4' in op or 'x3' in op: self.store_data = _regs(ops[1])
            else:
                for o in ops: self.src |= _regs(o)
                if ' lds' in (' ' + mods + ' ') or 'lds' in op: self.src |= {'m0'}
        elif op.startswith('ds_'):
            self.kind = 'ds'
            if op.startswith('ds_read') or '_rtn' in op or 'permute' in op or 'swizzle' in op:
                self.dst = _regs(ops[0])
                for o in ops[1:]: self.src |= _regs(o)
            else:
                for o in ops: self.src |= _regs(o)
        elif op.startswith('s_'):
            self.kind = 'salu'
            if op.startswith('s_cmp') or op.startswith('s_cbranch') or op in ('s_branch', 's_waitcnt', 's_barrier', 's_sleep', 's_setprio', 's_endpgm', 's_bitcmp1_b32', 's_bitcmp0_b32'):
                for o in ops: self.src |= _regs(o)
            elif op.startswith('s_load') or op.startswith('s_buffer_load') or op.startswith('s_mem'):
                self.kind = 'smem'
                self.dst = _regs(ops[0])
                for o in ops[1:]: self.src |= _regs(o)
            else:
                if ops: self.dst = _regs(ops[0])
                for o in ops[1:]: self.src |= _regs(o)
                if 'saveexec' in op: self.dst |= {'exec'}

VALU_KINDS = ('valu', 'trans', 'readlane', 'permlane', 'mfma')

def mfma_passes(op):
    if '32x32x16' in op or '32x32x8' in op: return 8
    if '16x16x32' in op or '16x16x16' in op: return 4
    if '16x16x4_f32' in op: return 8
    if '32x32x2_f32' in op: return 16
    return 16

def needed(prod, cons):
    n = 0
    pv = prod.kind in ('valu', 'trans', 'readlane', 'permlane')
    cv = cons.kind in VALU_KINDS
    pd_v = {r for r in prod.dst if r[0] in 'va' and r != 'vcc'}
    pd_s = {r for r in prod.dst if r[0] == 's' or r == 'vcc'}
    if pv:
        if cons.dpp and (pd_v & cons.src): n = max(n, 2)
        if cons.kind == 'permlane' and (pd_v & cons.src): n = max(n, 2)
        if cons.kind == 'readlane' and (pd_v & cons.src): n = max(n, 1)
        if cons.kind == 'mfma' and (pd_v & cons.src): n = max(n, 2)
        if prod.kind == 'trans' and cv and (pd_v & (cons.src | cons.dst)): n = max(n, 1)
        if prod.kind == 'trans' and cons.kind in ('vmem', 'ds') and (pd_v & cons.src): n = max(n, 1)
        if pd_s:
            if cv and (pd_s & cons.src):
                n = max(n, 4 if cons.kind == 'readlane' or cons.op.startswith('v_writelane') else 2)
            if cons.kind == 'vmem' and (pd_s & cons.src): n = max(n, 5)
            if cons.kind in ('salu', 'smem') and (pd_s & cons.src): n = max(n, 1)
        if 'exec' in prod.dst: n = max(n, 5)
    if prod.kind == 'mfma':
        p = mfma_passes(prod.op)
        sg = '_f32' in prod.op.split('x')[-1] and prod.op.endswith('_f32')
        tab_rw = {2: 5, 4: 8, 8: 12, 16: 20}[p]
        tab_c = {2: 4, 4: 6, 8: 10, 16: 18}[p]
        tab_war = {2: 1, 4: 3, 8: 7, 16: 15}[p]
        if cons.kind == 'mfma':
            if prod.dst & cons.srcAB: n = max(n, tab_rw)
            if prod.dst & cons.srcC:
                if not (prod.dst == cons.srcC and prod.op == cons.op): n = max(n, tab_c)
            if (prod.dst & cons.dst) and not (prod.dst == cons.dst and prod.op == cons.op): n = max(n, tab_c)
        else:
            if prod.dst & (cons.src | cons.dst): n = max(n, tab_rw)
            if cv and (prod.srcC & cons.dst): n = max(n, tab_war)
    if prod.store_data:
        if cv and (prod.store_data & cons.dst): n = max(n, 2)
        elif prod.store_data & cons.dst: n = max(n, 1)
    if prod.kind == 'salu' and 'm0' in prod.dst and 'm0' in cons.src: n = max(n, 1)
    return n

class Asm:
    def __init__(self):
        self.lines = []
        self.hist = []
        self.pos = 0
        self.nlabel = 0
    def raw(self, text):
        self.lines.append(text)
    def comment(self, text):
        self.lines.append(f"  ; {text}")
    def label(self, name):
        self.lines.append(f"{name}:")
    def newlabel(self, base='L'):
        self.nlabel += 1
        return f"{base}_{self.nlabel}"
    def fence(self, n=None):
        need = 0
        for ins, p in self.hist:
            if ins.kind == 'mfma': w = {2: 5, 4: 8, 8: 12, 16: 20}[mfma_passes(ins.op)]
            elif ins.kind in ('valu', 'trans', 'readlane', 'permlane'):
                w = 5 if any(r[0] == 's' or r in ('vcc', 'exec') for r in ins.dst) else 2
            elif ins.store_data: w = 2
            else: w = 1 if 'm0' in ins.dst else 0
            need = max(need, w - (self.pos - p - 1))
        while need > 0:
            k = min(need, 16)
            self._emit(Ins(f"s_nop {k-1}"))
            need -= k
    def _emit(self, ins):
        self.lines.append("  " + ins.text)
        self.hist.append((ins, self.pos))
        self.pos += ins.ws
        self.hist = [(i, p) for (i, p) in self.hist if self.pos - p <= 24]
    def __call__(self, text):
        for t in text.strip().split('\n'):
            t = t.strip()
            if not t: continue
            if t.startswith(';'):
                self.lines.append("  " + t); continue
            if t.endswith(':'):
                self.label(t[:-1]); continue
            ins = Ins(t)
            need = 0
            for prod, p in self.hist:
                req = needed(prod, ins)
                have = self.pos - (p + prod.ws) + (prod.ws - 1) if prod.op == 's_nop' else self.pos - p - 1
                if req > have: need = max(need, req - have)
            while need > 0:
                k = min(need, 16)
                self._emit(Ins(f"s_nop {k-1}"))
                need -= k
            self._emit(ins)
    def text(self):
        return "\n".join(self.lines) + "\n"

class Regs:
    def __init__(self, prefix, start, limit):
        self.prefix = prefix; self.next = start; self.limit = limit; self.names = {}
        self.hw = start
    def alloc(self, n=1, align=1, name=None):
        s = (self.next + align - 1) // align * align
        if s + n > self.limit: raise RuntimeError(f"out of {self.prefix} registers for {name}: need {s+n} > {self.limit}")
        self.next = s + n
        self.hw = max(self.hw, self.next)
        if name: self.names[name] = (s, n)
        return s
    def mark(self): return self.next
    def release(self, m): self.next = m

def vr(base, n=1):
    return f"v{base}" if n == 1 else f"v[{base}:{base+n-1}]"
def sr(base, n=1):
    return f"s{base}" if n == 1 else f"s[{base}:{base+n-1}]"
```

```python
KN = "adaLN_cond__gqa_block_cached__mixer_channel_mlp__decode_kernel"
def header(a, grid, block, lds):
    a.raw(f"; @launch grid=({grid},1,1) block=({block},1,1) lds={lds}")
    a.raw('.amdgcn_target "amdgcn-amd-amdhsa--gfx950"')
    a.raw(".text")
    a.raw(f".globl {KN}")
    a.raw(".p2align 8")
    a.raw(f".type {KN},@function")
    a.raw(f"{KN}:")
def footer(a, nv, ns=102):
    a.raw('.section .rodata,"a"')
    a.raw(".p2align 6")
    a.raw(f".amdhsa_kernel {KN}")
    a.raw(f"  .amdhsa_next_free_vgpr {nv}")
    a.raw(f"  .amdhsa_next_free_sgpr {ns}")
    a.raw(f"  .amdhsa_accum_offset {(nv+3)//4*4}")
    a.raw("  .amdhsa_group_segment_fixed_size 0")
    a.raw("  .amdhsa_kernarg_size 120")
    a.raw("  .amdhsa_user_sgpr_count 2")
    a.raw("  .amdhsa_user_sgpr_kernarg_segment_ptr 1")
    a.raw("  .amdhsa_system_sgpr_workgroup_id_x 1")
    a.raw(".end_amdhsa_kernel")
```

```python
import sys
sys.path.insert(0, 'dev')
from asmb import *
from common import *
def gen(out):
    a = Asm()
    header(a, 1, 64, 0)
    a("""
    s_cmp_ge_u32 s2, 1
    s_cbranch_scc1 L_end
    s_load_dwordx2 s[20:21], s[0:1], 112
    s_waitcnt lgkmcnt(0)
    s_mov_b32 s24, s20
    s_mov_b32 s25, s21
    s_mov_b32 s26, 0x10000000
    s_mov_b32 s27, 0x20000
    v_lshlrev_b32 v1, 2, v0
    v_mov_b32 v2, v0
    v_add_u32 v3, 100, v0
    v_permlane32_swap_b32 v2, v3
    buffer_store_dword v2, v1, s[24:27], 0 offen offset:0
    buffer_store_dword v3, v1, s[24:27], 0 offen offset:256
    v_mov_b32 v4, v0
    v_add_u32 v5, 100, v0
    v_permlane16_swap_b32 v4, v5
    buffer_store_dword v4, v1, s[24:27], 0 offen offset:512
    buffer_store_dword v5, v1, s[24:27], 0 offen offset:768
    v_mov_b32 v6, 0
    v_mov_b32_dpp v6, v0 row_ror:4 row_mask:0xf bank_mask:0xf
    buffer_store_dword v6, v1, s[24:27], 0 offen offset:1024
    v_mov_b32 v7, 1.0
    v_mov_b32 v8, 2.0
    v_cvt_pk_bf16_f32 v9, v7, v8
    buffer_store_dword v9, v1, s[24:27], 0 offen offset:1280
    v_mov_b32 v10, 0x11223344
    v_mov_b32 v11, 0xaabbccdd
    s_mov_b32 s4, 0x05040100
    s_mov_b32 s5, 0x07060302
    v_perm_b32 v12, v11, v10, s4
    v_perm_b32 v13, v11, v10, s5
    buffer_store_dword v12, v1, s[24:27], 0 offen offset:1536
    buffer_store_dword v13, v1, s[24:27], 0 offen offset:1792
    v_mov_b32 v14, 1.0
    v_mov_b32 v15, 2.0
    v_mov_b32 v16, 0.5
    v_mov_b32 v17, 4.0
    s_mov_b32 s6, 0x40400000
    s_mov_b32 s7, 0x41200000
    v_pk_fma_f32 v[16:17], v[14:15], s[6:7], v[16:17] op_sel_hi:[1,0,1]
    buffer_store_dword v16, v1, s[24:27], 0 offen offset:2048
    buffer_store_dword v17, v1, s[24:27], 0 offen offset:2304
    v_mov_b32 v16, 0.5
    v_mov_b32 v17, 4.0
    v_pk_fma_f32 v[16:17], v[14:15], s[6:7], v[16:17] op_sel:[0,1,0] op_sel_hi:[1,1,1]
    buffer_store_dword v16, v1, s[24:27], 0 offen offset:2560
    buffer_store_dword v17, v1, s[24:27], 0 offen offset:2816
    v_cvt_f32_u32 v18, v0
    v_add_f32_dpp v19, v18, v18 row_ror:8 row_mask:0xf bank_mask:0xf
    buffer_store_dword v19, v1, s[24:27], 0 offen offset:3072
    s_getreg_b32 s8, hwreg(HW_REG_XCC_ID)
    v_mov_b32 v20, s8
    buffer_store_dword v20, v1, s[24:27], 0 offen offset:3328
    s_waitcnt vmcnt(0)
    L_end:
    s_endpgm
    """)
    footer(a, 64)
    open(out, 'w').write(a.text())
gen('t_sem.s')
if len(sys.argv) > 1:
    import bench, torch, numpy as np
    inputs = bench.make_inputs(0, fast=True)
    r = bench.Runner('t_sem.s', inputs)
    r.run(flush=False)
    w = r.ws[:64*14].cpu().numpy().reshape(14, 64)
    for i in range(5): print(i, list(w[i]))
    for i in range(5, 8): print(i, hex(w[i][0] & 0xffffffff))
    for i in range(8, 13): print(i, w[i].view(np.float32)[:20])
    print(13, w[13][:2])
```
